```python
import torch

def _softmax(x, axis=-1):
    return torch.softmax(x, dim=axis)
def _gelu(x):
    return torch.nn.functional.gelu(x, approximate="tanh")
def _silu(x):
    return torch.nn.functional.silu(x)
def _sigmoid(x):
    return torch.sigmoid(x)
def _layernorm(x, axis=-1, eps=1e-5):
    m = x.mean(dim=axis, keepdim=True)
    v = x.var(dim=axis, keepdim=True, unbiased=False)
    return (x - m) / torch.sqrt(v + eps)
def _scatter_add(tgt, idx, src, axis=0):
    return tgt.clone().index_add_(axis, idx, src)
def _segment_sum(src, seg, n):
    out = torch.zeros((n,) + src.shape[1:], dtype=src.dtype)
    return out.index_add_(0, seg, src)
def _pad(x, pw):
    flat = tuple(v for pair in reversed(pw) for v in pair)
    return torch.nn.functional.pad(x, flat)

kernel_name = 'concat_heads__softmax_full_mha__spectral_fnet__prompt'

def setup_inputs():

    _w = (lambda a: (lambda t: t.to(torch.bfloat16) if t.is_floating_point() else t)(torch.as_tensor(a)))
    def _A_setup():
        B, S, D = 1, 2048, 448
        return {
            "x": _w((lambda *s: torch.randn(*s, dtype=torch.bfloat16) * 0.2)(B, S, D)),
            "wqkv": _w((lambda *s: torch.randn(*s, dtype=torch.bfloat16) * 0.8)(D, 3 * D)),
            "wo": _w((lambda *s: torch.randn(*s, dtype=torch.bfloat16) * 0.2)(D, D)),
        }
    _A_in = _A_setup()

    def _B_setup():
        B, S, D = 1, 2048, 448
        ns = torch.arange(S)[:, None] * torch.arange(S)[None, :]
        nd = torch.arange(D)[:, None] * torch.arange(D)[None, :]
        Ws_re = torch.cos(-2.0 * torch.pi * ns / S).to(float)
        Ws_im = torch.sin(-2.0 * torch.pi * ns / S).to(float)
        Wd_re = torch.cos(-2.0 * torch.pi * nd / D).to(float)
        Wd_im = torch.sin(-2.0 * torch.pi * nd / D).to(float)
        return {
            "x": _w((lambda *s: torch.randn(*s, dtype=torch.bfloat16) * 0.05)(B, S, D)),
            "dft_seq_re": _w(Ws_re),
            "dft_seq_im": _w(Ws_im),
            "dft_hid_re": _w(Wd_re),
            "dft_hid_im": _w(Wd_im),
        }
    _B_in = _B_setup()

    return {
        "A_x": _A_in["x"],
        "A_wqkv": _A_in["wqkv"],
        "A_wo": _A_in["wo"],
        "B_x": _B_in["x"],
        "B_dft_seq_re": _B_in["dft_seq_re"],
        "B_dft_seq_im": _B_in["dft_seq_im"],
        "B_dft_hid_re": _B_in["dft_hid_re"],
        "B_dft_hid_im": _B_in["dft_hid_im"],
    }

def reference(A_x, A_wqkv, A_wo, B_x, B_dft_seq_re, B_dft_seq_im, B_dft_hid_re, B_dft_hid_im):
    def _A_ref(x, wqkv, wo):
        B, S, D = x.shape
        H = 16; Dh = D // H
        qkv = (lambda x, *d: x.permute(*d))((x @ wqkv).reshape(B, S, 3, H, Dh), 2, 0, 3, 1, 4)
        q, k, v = qkv[0], qkv[1], qkv[2]
        scale = Dh ** -0.5
        scores = torch.einsum("bhqd,bhkd->bhqk", q, k) * scale
        p = _softmax(scores, axis=-1)
        o = torch.einsum("bhqk,bhkd->bhqd", p, v)
        return (lambda x, *d: x.permute(*d))(o, 0, 2, 1, 3).reshape(B, S, D) @ wo

    def _B_ref(x, dft_seq_re, dft_seq_im, dft_hid_re, dft_hid_im):
        a = torch.einsum("bsd,ed->bse", x, dft_hid_re)
        b = torch.einsum("bsd,ed->bse", x, dft_hid_im)
        y = torch.einsum("ts,bse->bte", dft_seq_re, a) - torch.einsum("ts,bse->bte", dft_seq_im, b)
        return y

    a = _A_ref(A_x, A_wqkv, A_wo)
    b = _B_ref(B_x, B_dft_seq_re, B_dft_seq_im, B_dft_hid_re, B_dft_hid_im)
    return torch.concatenate([a, b], axis=-1)
```

```python
import math, struct

QF = 0
KF = 2 << 20
VF = 4 << 20
OF = 6 << 20
UF = 8 << 20
WOF = 12 << 20
HF = 13 << 20
WS_BYTES = 268435456

def f32bits(x):
    return struct.unpack("<I", struct.pack("<f", x))[0]

class Em:
    def __init__(self):
        self.lines = []
    def __call__(self, s):
        for l in s.strip("\n").split("\n"):
            self.lines.append("    " + l.strip() if not l.strip().endswith(":") else l.strip())
    def label(self, name):
        self.lines.append(name + ":")
    def text(self):
        return "\n".join(self.lines) + "\n"

def vr(base, n):
    return f"v[{base}:{base+n-1}]"
def sr(base, n):
    return f"s[{base}:{base+n-1}]"

def srd(e, d, lo, hi, nbytes):
    e(f"s_mov_b32 s{d}, s{lo}")
    e(f"s_mov_b32 s{d+1}, s{hi}")
    e(f"s_mov_b32 s{d+2}, {hex(nbytes)}")
    e(f"s_mov_b32 s{d+3}, 0x00020000")

def kdesc(name, vgpr, sgpr=96):
    acc = (vgpr + 3) // 4 * 4
    return f""".p2align 6
.amdhsa_kernel {name}
  .amdhsa_next_free_vgpr {vgpr}
  .amdhsa_next_free_sgpr {sgpr}
  .amdhsa_accum_offset {acc}
  .amdhsa_group_segment_fixed_size 0
  .amdhsa_kernarg_size 88
  .amdhsa_user_sgpr_count 2
  .amdhsa_user_sgpr_kernarg_segment_ptr 1
  .amdhsa_system_sgpr_workgroup_id_x 1
.end_amdhsa_kernel
"""
def khead(name):
    return f""".globl {name}
.p2align 8
.type {name},@function
{name}:
"""
```

```python
from common import *

C_SCALE = math.log2(math.e) / math.sqrt(28.0)
N_QKV = 256
N_WO = 28
N_H = 49
K1_GRID = N_QKV + N_WO + N_H
K1_LDS = 448 * 192

def gen_k1():
    e = Em()
    e(f"""
    s_cmp_ge_u32 s2, {K1_GRID}
    s_cbranch_scc1 K1_done
    s_load_dwordx4 s[4:7], s[0:1], 0
    s_load_dwordx2 s[8:9], s[0:1], 80
    s_load_dwordx2 s[32:33], s[0:1], 16
    s_load_dwordx4 s[36:39], s[0:1], 48
    v_and_b32 v1, 63, v0
    v_lshrrev_b32 v2, 6, v0
    s_nop 0
    v_readfirstlane_b32 s10, v2
    v_and_b32 v3, 31, v1
    v_lshrrev_b32 v4, 5, v1
    v_lshlrev_b32 v5, 4, v1
    s_mov_b32 s30, 0
    s_mov_b32 s31, -1
    s_waitcnt lgkmcnt(0)
    """)
    srd(e, 24, 8, 9, WS_BYTES)
    e(f"""
    s_cmp_ge_u32 s2, {N_QKV}
    s_cbranch_scc1 K1_prep
    s_and_b32 s11, s2, 15
    s_lshr_b32 s12, s2, 4
    """)
    srd(e, 16, 4, 5, 2048 * 896)
    srd(e, 20, 6, 7, 448 * 2688)
    e(f"""
    v_mul_u32_u24 v6, 43, v1
    v_lshrrev_b32 v6, 9, v6
    v_mul_u32_u24 v7, 12, v6
    v_sub_u32 v7, v1, v7
    v_lshrrev_b32 v8, 2, v7
    v_and_b32 v9, 3, v7
    v_mul_u32_u24 v6, 2688, v6
    v_mul_u32_u24 v8, 896, v8
    v_lshlrev_b32 v9, 4, v9
    v_add3_u32 v6, v6, v8, v9
    s_mul_i32 s13, s12, 56
    v_add_u32 v6, s13, v6
    v_mul_u32_u24 v7, 896, v3
    v_lshl_add_u32 v7, v4, 4, v7
    s_lshl_b32 s14, s11, 7
    s_lshl_b32 s15, s10, 5
    s_add_u32 s14, s14, s15
    s_mul_i32 s14, s14, 896
    s_mul_i32 s15, s10, 10752
    s_mul_i32 s28, s10, 768
    """)
    XB = 128
    for c in range(4):
        e("s_mov_b32 exec_hi, 0xffff")
        for i in range(7):
            gi = c * 28 + i * 4
            e(f"""
            s_add_u32 s29, s28, {gi*768}
            s_mov_b32 m0, s29
            s_add_u32 s29, s15, {gi*10752}
            buffer_load_dwordx4 v6, s[20:23], s29 offen lds
            """)
        e("s_mov_b32 exec_hi, -1")
        for i in range(7):
            ks = c * 7 + i
            e(f"buffer_load_dwordx4 {vr(XB+4*ks,4)}, v7, s[16:19], s14 offen offset:{ks*32}")
    e(f"""
    v_and_b32 v8, 15, v1
    v_lshrrev_b32 v8, 2, v8
    v_lshl_add_u32 v8, v4, 3, v8
    v_mul_u32_u24 v8, 192, v8
    v_bfe_u32 v9, v1, 4, 1
    v_lshl_add_u32 v8, v9, 5, v8
    v_and_b32 v9, 3, v1
    v_lshl_add_u32 v8, v9, 3, v8
    v_add_u32 v9, 43008, v8
    """)
    AQ, AK, AV = 64, 80, 96
    def wread(ks, setb):
        base = "v8" if ks < 14 else "v9"
        off = (ks % 14) * 3072
        for slot in range(3):
            for rd in range(2):
                e(f"ds_read_b64_tr_b16 {vr(setb+slot*4+rd*2,2)}, {base} offset:{off+rd*768+slot*64}")
    WS0, WS1 = 16, 28
    for c in range(4):
        e(f"s_waitcnt vmcnt({42-14*c})")
        e("s_barrier")
        wread(c * 7, WS0 if (c * 7) % 2 == 0 else WS1)
        for i in range(7):
            ks = c * 7 + i
            cur = WS0 if ks % 2 == 0 else WS1
            nxt = WS1 if ks % 2 == 0 else WS0
            if i < 6:
                wread(ks + 1, nxt)
                e("s_waitcnt lgkmcnt(6)")
            else:
                e("s_waitcnt lgkmcnt(0)")
            x = vr(XB + 4 * ks, 4)
            cq = "0" if ks == 0 else vr(AQ, 16)
            ck = "0" if ks == 0 else vr(AK, 16)
            cv = "0" if ks == 0 else vr(AV, 16)
            e(f"v_mfma_f32_32x32x16_bf16 {vr(AQ,16)}, {vr(cur,4)}, {x}, {cq}")
            e(f"v_mfma_f32_32x32x16_bf16 {vr(AK,16)}, {vr(cur+4,4)}, {x}, {ck}")
            e(f"v_mfma_f32_32x32x16_bf16 {vr(AV,16)}, {x}, {vr(cur+8,4)}, {cv}")
    e(f"""
    s_mov_b32 s34, {hex(f32bits(C_SCALE))}
    v_cmp_le_u32 s[40:41], 28, v3
    v_cmp_eq_u32 vcc, 28, v3
    v_mov_b32 v10, 0x3f803f80
    s_lshl_b32 s13, s12, 6
    s_lshl_b32 s14, s11, 2
    s_add_u32 s13, s13, s14
    s_add_u32 s13, s13, s10
    s_lshl_b32 s13, s13, 11
    v_cndmask_b32 v10, 0, v10, vcc
    s_nop 7
    """)
    for r in range(16):
        e(f"v_mul_f32 v{AQ+r}, s34, v{AQ+r}")
    for r in range(12, 16):
        e(f"v_cndmask_b32 v{AQ+r}, v{AQ+r}, 0, s[30:31]")
    e(f"v_cndmask_b32 v{AK+12}, v{AK+12}, 1.0, s[30:31]")
    for r in range(13, 16):
        e(f"v_cndmask_b32 v{AK+r}, v{AK+r}, 0, s[30:31]")
    PQ, PK, PV = 16, 24, 32
    for (p, a) in ((PQ, AQ), (PK, AK), (PV, AV)):
        for i in range(8):
            e(f"v_cvt_pk_bf16_f32 v{p+i}, v{a+2*i}, v{a+2*i+1}")
    for i in range(8):
        e(f"v_cndmask_b32 v{PV+i}, v{PV+i}, v10, s[40:41]")
    e(f"""
    s_add_u32 s14, s13, {QF}
    s_add_u32 s15, s13, {KF}
    s_add_u32 s28, s13, {VF}
    buffer_store_dwordx4 {vr(PQ,4)}, v5, s[24:27], s14 offen
    buffer_store_dwordx4 {vr(PQ+4,4)}, v5, s[24:27], s14 offen offset:1024
    buffer_store_dwordx4 {vr(PK,4)}, v5, s[24:27], s15 offen
    buffer_store_dwordx4 {vr(PK+4,4)}, v5, s[24:27], s15 offen offset:1024
    buffer_store_dwordx4 {vr(PV,4)}, v5, s[24:27], s28 offen
    buffer_store_dwordx4 {vr(PV+4,4)}, v5, s[24:27], s28 offen offset:1024
    s_endpgm
    """)
    e.label("K1_prep")
    e(f"""
    s_sub_u32 s11, s2, {N_QKV}
    s_lshl_b32 s11, s11, 2
    s_add_u32 s11, s11, s10
    s_cmp_ge_u32 s11, {N_WO*4}
    s_cbranch_scc1 K1_prepH
    """)
    srd(e, 16, 32, 33, 448 * 896)
    e(f"""
    s_lshr_b32 s12, s11, 3
    s_and_b32 s13, s11, 7
    s_mul_i32 s13, s13, {2*28*896}
    s_lshl_b32 s14, s12, 6
    s_add_u32 s13, s13, s14
    v_mul_u32_u24 v6, {4*896}, v4
    v_lshl_add_u32 v6, v3, 1, v6
    """)
    RB = 16
    for i in range(4):
        hh_, s_ = i >> 1, i & 1
        for j in range(8):
            row = 28 * hh_ + 16 * s_ + 8 * (j >> 2) + (j & 3)
            e(f"s_add_u32 s15, s13, {row*896}")
            e(f"buffer_load_ushort v{RB+i*8+j}, v6, s[16:19], s15 offen")
    e("s_waitcnt vmcnt(0)")
    PB = 64
    for i in range(4):
        for d in range(4):
            e(f"v_lshl_or_b32 v{PB+i*4+d}, v{RB+i*8+2*d+1}, 16, v{RB+i*8+2*d}")
        if i & 1:
            e(f"v_cndmask_b32 v{PB+i*4+2}, v{PB+i*4+2}, 0, s[30:31]")
            e(f"v_cndmask_b32 v{PB+i*4+3}, v{PB+i*4+3}, 0, s[30:31]")
    e(f"""
    s_lshl_b32 s14, s11, 12
    s_add_u32 s14, s14, {WOF}
    """)
    for i in range(4):
        e(f"buffer_store_dwordx4 {vr(PB+i*4,4)}, v5, s[24:27], s14 offen offset:{i*1024}")
    e("s_endpgm")
    e.label("K1_prepH")
    e(f"""
    s_sub_u32 s11, s11, {N_WO*4}
    s_mul_i32 s12, s11, 4682
    s_lshr_b32 s12, s12, 16
    s_mul_i32 s13, s12, 14
    s_sub_u32 s13, s11, s13
    s_cmp_ge_u32 s13, 7
    s_cselect_b32 s16, s38, s36
    s_cselect_b32 s17, s39, s37
    s_cselect_b32 s14, 7, 0
    s_mov_b32 s18, {448*896}
    s_mov_b32 s19, 0x00020000
    s_sub_u32 s13, s13, s14
    s_lshl_b32 s13, s13, 7
    s_mul_i32 s14, s12, {32*896}
    s_add_u32 s13, s13, s14
    v_mul_u32_u24 v6, 896, v3
    v_lshl_add_u32 v6, v4, 3, v6
    """)
    for i in range(4):
        e(f"buffer_load_dwordx2 {vr(RB+i*4,2)}, v6, s[16:19], s13 offen offset:{i*32}")
        e(f"buffer_load_dwordx2 {vr(RB+i*4+2,2)}, v6, s[16:19], s13 offen offset:{i*32+16}")
    e(f"""
    s_lshl_b32 s14, s11, 12
    s_add_u32 s14, s14, {HF}
    s_waitcnt vmcnt(0)
    """)
    for i in range(4):
        e(f"buffer_store_dwordx4 {vr(RB+i*4,4)}, v5, s[24:27], s14 offen offset:{i*1024}")
    e.label("K1_done")
    e("s_endpgm")
    return e.text()
```

```python
from common import *

N_ATT = 256
N_DFT = 224
K2_GRID = N_ATT + N_DFT
K2_LDS = 73728
T_THRESH = 48.0

def gen_att(e):
    Q0, Q1 = 8, 12
    KN = 16
    VC = 24
    P = 32
    O = 40
    SA, SB = 56, 72
    VM, VMX, T1, T2, T3, VD = 88, 89, 90, 91, 92, 93
    VL = 5
    VRB = 6
    VRN = 7
    e(f"""
    s_and_b32 s11, s2, 15
    s_lshr_b32 s12, s2, 4
    s_lshl_b32 s13, s12, 2
    s_add_u32 s13, s13, s10
    s_lshl_b32 s14, s11, 6
    s_add_u32 s15, s14, s13
    s_lshl_b32 s15, s15, 11
    s_add_u32 s15, s15, {QF}
    buffer_load_dwordx4 {vr(Q0,4)}, v{VL}, s[24:27], s15 offen
    buffer_load_dwordx4 {vr(Q1,4)}, v{VL}, s[24:27], s15 offen offset:1024
    s_add_u32 s16, s14, s10
    s_lshl_b32 s16, s16, 11
    s_add_u32 s17, s16, {VF}
    s_add_u32 s16, s16, {KF}
    s_lshl_b32 s18, s10, 11
    """)
    def dma(buf_sreg_expr=None, bufconst=None):
        e(f"""
        s_add_u32 s20, s19, s18
        s_mov_b32 m0, s20
        s_add_u32 s20, s20, 8192
        buffer_load_dwordx4 v{VL}, s[24:27], s16 offen lds
        buffer_load_dwordx4 v{VL}, s[24:27], s16 offen offset:1024 lds
        s_mov_b32 m0, s20
        s_add_u32 s16, s16, 8192
        buffer_load_dwordx4 v{VL}, s[24:27], s17 offen lds
        buffer_load_dwordx4 v{VL}, s[24:27], s17 offen offset:1024 lds
        s_add_u32 s17, s17, 8192
        s_add_u32 s19, s19, 16384
        s_and_b32 s19, s19, 0xffff
        """)
    e("s_mov_b32 s19, 0")
    for c in range(3):
        dma()
    for r in range(16):
        e(f"v_mov_b32 v{O+r}, 0")
    e(f"""
    v_mov_b32 v{VM}, 0
    s_mov_b32 s21, 0xff800000
    s_mov_b32 s22, 0xff800000
    s_mov_b32 s23, 0
    v_mov_b32 v{VRB}, v{VL}
    v_add_u32 v{VRN}, 16384, v{VL}
    s_waitcnt vmcnt(8)
    s_barrier
    ds_read_b128 {vr(KN,4)}, v{VRB}
    ds_read_b128 {vr(KN+4,4)}, v{VRB} offset:1024
    s_waitcnt lgkmcnt(0)
    v_mfma_f32_32x32x16_bf16 {vr(SA,16)}, {vr(KN,4)}, {vr(Q0,4)}, 0
    v_mfma_f32_32x32x16_bf16 {vr(SA,16)}, {vr(KN+4,4)}, {vr(Q1,4)}, {vr(SA,16)}
    ds_read_b128 {vr(KN,4)}, v{VRB} offset:2048
    ds_read_b128 {vr(KN+4,4)}, v{VRB} offset:3072
    ds_read_b128 {vr(VC,4)}, v{VRB} offset:8192
    ds_read_b128 {vr(VC+4,4)}, v{VRB} offset:9216
    s_nop 7
    """)
    rare_blocks = []
    e.label("ATT_loop")
    for i in range(4):
        SC, SN = (SA, SB) if i % 2 == 0 else (SB, SA)
        def kaddr(ti):
            return (f"v{VRB}", ti * 2048) if ti < 4 else (f"v{VRN}", (ti - 4) * 2048)
        def vaddr(ti):
            return (f"v{VRB}", 8192 + ti * 2048) if ti < 4 else (f"v{VRN}", 8192 + (ti - 4) * 2048)
        if i == 2:
            e(f"""
            s_cmp_ge_u32 s23, 14
            s_cbranch_scc1 ATT_w0
            s_waitcnt vmcnt(4)
            s_barrier
            s_cmp_ge_u32 s23, 13
            s_cbranch_scc1 ATT_nodma
            """)
            dma()
            e("s_branch ATT_nodma")
            e.label("ATT_w0")
            e("s_waitcnt vmcnt(0)")
            e("s_barrier")
            e.label("ATT_nodma")
        e(f"s_waitcnt lgkmcnt(2)")
        e(f"v_mfma_f32_32x32x16_bf16 {vr(SN,16)}, {vr(KN,4)}, {vr(Q0,4)}, 0")
        e(f"v_max3_f32 v{VMX}, v{SC}, v{SC+1}, v{SC+2}")
        e(f"v_max3_f32 v{T1}, v{SC+3}, v{SC+4}, v{SC+5}")
        e(f"v_max3_f32 v{VMX}, v{VMX}, v{SC+6}, v{SC+7}")
        e(f"v_max3_f32 v{T1}, v{T1}, v{SC+8}, v{SC+9}")
        e(f"v_mfma_f32_32x32x16_bf16 {vr(SN,16)}, {vr(KN+4,4)}, {vr(Q1,4)}, {vr(SN,16)}")
        a, o = kaddr(i + 2)
        e(f"ds_read_b128 {vr(KN,4)}, {a} offset:{o}")
        e(f"ds_read_b128 {vr(KN+4,4)}, {a} offset:{o+1024}")
        e(f"v_max3_f32 v{VMX}, v{VMX}, v{SC+10}, v{SC+11}")
        e(f"v_max3_f32 v{T1}, v{T1}, v{SC+12}, v{SC+13}")
        e(f"v_max3_f32 v{VMX}, v{VMX}, v{SC+14}, v{SC+15}")
        e(f"v_max_f32 v{VMX}, v{VMX}, v{T1}")
        e(f"v_cmp_lt_f32 vcc, s21, v{VMX}")
        e(f"s_cbranch_vccnz ATT_rare{i}")
        e.label(f"ATT_back{i}")
        for h in range(2):
            b = SC + 8 * h
            e(f"v_exp_f32 v{b}, v{b}")
            e(f"v_exp_f32 v{b+1}, v{b+1}")
            e(f"v_exp_f32 v{b+2}, v{b+2}")
            e(f"v_cvt_pk_bf16_f32 v{P+4*h}, v{b}, v{b+1}")
            e(f"v_exp_f32 v{b+3}, v{b+3}")
            e(f"v_exp_f32 v{b+4}, v{b+4}")
            e(f"v_cvt_pk_bf16_f32 v{P+4*h+1}, v{b+2}, v{b+3}")
            e(f"v_exp_f32 v{b+5}, v{b+5}")
            e(f"v_exp_f32 v{b+6}, v{b+6}")
            e(f"v_cvt_pk_bf16_f32 v{P+4*h+2}, v{b+4}, v{b+5}")
            e(f"v_exp_f32 v{b+7}, v{b+7}")
            if h == 0:
                e("s_waitcnt lgkmcnt(2)")
            else:
                e("s_nop 0")
            e(f"v_cvt_pk_bf16_f32 v{P+4*h+3}, v{b+6}, v{b+7}")
            e("s_nop 1")
            e(f"v_mfma_f32_32x32x16_bf16 {vr(O,16)}, {vr(VC+4*h,4)}, {vr(P+4*h,4)}, {vr(O,16)}")
        a, o = vaddr(i + 1)
        e(f"ds_read_b128 {vr(VC,4)}, {a} offset:{o}")
        e(f"ds_read_b128 {vr(VC+4,4)}, {a} offset:{o+1024}")
        rare_blocks.append((i, SC, SN))
    e(f"""
    v_mov_b32 v{VRB}, v{VRN}
    v_add_u32 v{VRN}, 16384, v{VRN}
    v_and_b32 v{VRN}, 0xffff, v{VRN}
    s_add_u32 s23, s23, 1
    s_cmp_lt_u32 s23, 16
    s_cbranch_scc1 ATT_loop
    s_nop 15
    v_mov_b32 v{T1}, v{O+12}
    v_mov_b32 v{T2}, v{O+12}
    s_nop 1
    v_permlane32_swap_b32 v{T1}, v{T2}
    s_nop 1
    v_rcp_f32 v{T2}, v{T2}
    s_nop 0
    """)
    for r in range(16):
        e(f"v_mul_f32 v{O+r}, v{O+r}, v{T2}")
    for r in range(12, 16):
        e(f"v_cndmask_b32 v{O+r}, v{O+r}, 0, s[30:31]")
    for i in range(8):
        e(f"v_cvt_pk_bf16_f32 v{P+i}, v{O+2*i}, v{O+2*i+1}")
    e(f"""
    s_lshl_b32 s13, s13, 4
    s_add_u32 s13, s13, s11
    s_lshl_b32 s13, s13, 11
    s_add_u32 s13, s13, {OF}
    s_waitcnt lgkmcnt(0)
    buffer_store_dwordx4 {vr(P,4)}, v{VL}, s[24:27], s13 offen
    buffer_store_dwordx4 {vr(P+4,4)}, v{VL}, s[24:27], s13 offen offset:1024
    s_endpgm
    """)
    for (i, SC, SN) in rare_blocks:
        e.label(f"ATT_rare{i}")
        e(f"""
        s_nop 15
        v_mov_b32 v{T1}, v{VMX}
        v_mov_b32 v{T2}, v{VMX}
        s_nop 1
        v_permlane32_swap_b32 v{T1}, v{T2}
        s_nop 1
        v_max_f32 v{T1}, v{T1}, v{T2}
        v_max_f32 v{T1}, s22, v{T1}
        v_add_f32 v{T1}, v{VM}, v{T1}
        v_cvt_pk_bf16_f32 v{T2}, v{T1}, v{T1}
        v_and_b32 v{T3}, 0xffff0000, v{T2}
        v_sub_f32 v{VD}, v{T3}, v{VM}
        v_mov_b32 v{VM}, v{T3}
        v_lshrrev_b32 v{T2}, 16, v{T3}
        v_xor_b32 v{T2}, 0x8000, v{T2}
        v_cndmask_b32 v{Q1+2}, v{Q1+2}, v{T2}, s[30:31]
        v_sub_f32 v{T1}, 0, v{VD}
        v_min_f32 v{T1}, 0, v{T1}
        v_exp_f32 v{T1}, v{T1}
        """)
        for r in range(16):
            e(f"v_sub_f32 v{SC+r}, v{SC+r}, v{VD}")
        for r in range(16):
            e(f"v_sub_f32 v{SN+r}, v{SN+r}, v{VD}")
        for r in range(16):
            e(f"v_mul_f32 v{O+r}, v{O+r}, v{T1}")
        e(f"""
        s_mov_b32 s21, {hex(f32bits(T_THRESH))}
        s_mov_b32 s22, 0
        s_nop 1
        s_branch ATT_back{i}
        """)

def gen_dft(e):
    STG = 24576
    ACC = 64
    CF = 16
    XF = 32
    VCA = 40
    VXA = 44
    VCR = 45
    VXR = 49
    VC0, VC1, VXS = 50, 51, 52
    e(f"""
    s_sub_u32 s11, s2, {N_ATT}
    s_and_b32 s12, s11, 31
    s_lshr_b32 s13, s11, 5
    s_cmp_ge_u32 s12, 16
    s_cselect_b32 s16, s42, s40
    s_cselect_b32 s17, s43, s41
    s_mov_b32 s18, {2048*4096}
    s_mov_b32 s19, 0x00020000
    """)
    srd(e, 20, 38, 39, 2048 * 896)
    e(f"""
    v_lshrrev_b32 v6, 3, v1
    v_and_b32 v7, 7, v1
    v_lshrrev_b32 v8, 4, v1
    v_xor_b32 v9, v7, v8
    v_lshlrev_b32 v9, 4, v9
    v_lshl_add_u32 v{VC0}, v6, 12, v9
    v_xor_b32 v{VC1}, 64, v{VC0}
    v_bfe_u32 v9, v1, 4, 1
    v_lshlrev_b32 v9, 2, v9
    v_xor_b32 v9, v7, v9
    v_lshlrev_b32 v9, 4, v9
    v_mul_u32_u24 v{VXS}, 896, v6
    v_add_u32 v{VXS}, v{VXS}, v9
    s_and_b32 s14, s12, 15
    s_lshl_b32 s14, s14, 7
    s_lshl_b32 s15, s10, 5
    s_add_u32 s14, s14, s15
    s_lshl_b32 s14, s14, 12
    s_lshl_b32 s15, s10, 4
    s_mul_i32 s15, s15, 896
    s_lshl_b32 s28, s13, 7
    s_add_u32 s15, s15, s28
    s_lshl_b32 s28, s10, 12
    s_lshl_b32 s29, s10, 11
    s_add_u32 s29, s29, 16384
    """)
    def dma():
        e(f"""
        s_add_u32 s35, s34, s28
        s_mov_b32 m0, s35
        s_add_u32 s36, s14, {8*4096}
        buffer_load_dwordx4 v{VC0}, s[16:19], s14 offen lds
        s_add_u32 s35, s35, 1024
        s_mov_b32 m0, s35
        s_add_u32 s37, s14, {16*4096}
        buffer_load_dwordx4 v{VC1}, s[16:19], s36 offen lds
        s_add_u32 s35, s35, 1024
        s_mov_b32 m0, s35
        s_add_u32 s36, s14, {24*4096}
        buffer_load_dwordx4 v{VC0}, s[16:19], s37 offen lds
        s_add_u32 s35, s35, 1024
        s_mov_b32 m0, s35
        s_add_u32 s35, s34, s29
        buffer_load_dwordx4 v{VC1}, s[16:19], s36 offen lds
        s_mov_b32 m0, s35
        s_add_u32 s36, s15, {8*896}
        buffer_load_dwordx4 v{VXS}, s[20:23], s15 offen lds
        s_add_u32 s35, s35, 1024
        s_mov_b32 m0, s35
        s_add_u32 s14, s14, 128
        buffer_load_dwordx4 v{VXS}, s[20:23], s36 offen lds
        s_add_u32 s15, s15, {64*896}
        s_add_u32 s34, s34, {STG}
        s_cmp_ge_u32 s34, {3*STG}
        s_cselect_b32 s34, 0, s34
        """)
    e("s_mov_b32 s34, 0")
    dma()
    dma()
    e(f"""
    s_lshr_b32 s44, s10, 1
    s_and_b32 s45, s10, 1
    s_lshl_b32 s46, s44, 13
    v_bfe_u32 v6, v1, 1, 3
    v_xor_b32 v6, v6, v4
    v_lshlrev_b32 v6, 4, v6
    v_lshl_add_u32 v6, v3, 7, v6
    v_add_u32 v{VCA}, s46, v6
    v_xor_b32 v{VCA+1}, 32, v{VCA}
    v_xor_b32 v{VCA+2}, 64, v{VCA}
    v_xor_b32 v{VCA+3}, 96, v{VCA}
    v_and_b32 v6, 15, v1
    v_lshrrev_b32 v6, 2, v6
    v_lshl_add_u32 v7, v4, 3, v6
    v_lshlrev_b32 v7, 7, v7
    v_lshrrev_b32 v6, 1, v6
    v_xor_b32 v6, s45, v6
    v_lshl_add_u32 v7, v6, 6, v7
    v_bfe_u32 v6, v1, 4, 1
    v_lshl_add_u32 v7, v6, 5, v7
    v_and_b32 v6, 3, v1
    v_lshl_add_u32 v7, v6, 3, v7
    v_add_u32 v{VXA}, 16384, v7
    s_mov_b32 s47, 0
    s_mov_b32 s48, 0
    """)
    for r in range(32):
        e(f"v_mov_b32 v{ACC+r}, 0")
    e.label("DFT_loop")
    e(f"""
    s_cmp_ge_u32 s48, 31
    s_cbranch_scc1 DFT_w0
    s_waitcnt vmcnt(6)
    s_barrier
    s_cmp_ge_u32 s48, 30
    s_cbranch_scc1 DFT_nodma
    """)
    dma()
    e("s_branch DFT_nodma")
    e.label("DFT_w0")
    e("s_waitcnt vmcnt(0)")
    e("s_barrier")
    e.label("DFT_nodma")
    for k in range(4):
        e(f"v_add_u32 v{VCR+k}, s47, v{VCA+k}")
    e(f"v_add_u32 v{VXR}, s47, v{VXA}")
    def reads(ks):
        st = ks & 1
        e(f"ds_read_b64_tr_b16 {vr(XF+4*st,2)}, v{VXR} offset:{(16*ks)*128}")
        e(f"ds_read_b64_tr_b16 {vr(XF+4*st+2,2)}, v{VXR} offset:{(16*ks+4)*128}")
        e(f"ds_read_b128 {vr(CF+8*st,4)}, v{VCR+ks}")
        e(f"ds_read_b128 {vr(CF+8*st+4,4)}, v{VCR+ks} offset:4096")
    reads(0)
    for ks in range(4):
        st = ks & 1
        if ks < 3:
            reads(ks + 1)
            e("s_waitcnt lgkmcnt(4)")
        else:
            e("s_waitcnt lgkmcnt(0)")
        e(f"v_mfma_f32_32x32x16_bf16 {vr(ACC,16)}, {vr(XF+4*st,4)}, {vr(CF+8*st,4)}, {vr(ACC,16)}")
        e(f"v_mfma_f32_32x32x16_bf16 {vr(ACC+16,16)}, {vr(XF+4*st,4)}, {vr(CF+8*st+4,4)}, {vr(ACC+16,16)}")
    e(f"""
    s_add_u32 s47, s47, {STG}
    s_cmp_ge_u32 s47, {3*STG}
    s_cselect_b32 s47, 0, s47
    s_add_u32 s48, s48, 1
    s_cmp_lt_u32 s48, 32
    s_cbranch_scc1 DFT_loop
    s_cmp_ge_u32 s12, 16
    s_cselect_b32 s49, 0x80008000, 0
    s_cselect_b32 s50, 14, 0
    s_and_b32 s14, s12, 15
    s_lshl_b32 s14, s14, 2
    s_lshl_b32 s15, s44, 1
    s_add_u32 s14, s14, s15
    s_mul_i32 s14, s14, 28
    s_add_u32 s14, s14, s50
    s_lshl_b32 s15, s13, 1
    s_add_u32 s14, s14, s15
    s_add_u32 s14, s14, s45
    s_lshl_b32 s14, s14, 11
    s_add_u32 s14, s14, {UF}
    s_add_u32 s15, s14, {28*2048}
    s_nop 7
    """)
    for i in range(16):
        e(f"v_cvt_pk_bf16_f32 v{CF+i}, v{ACC+2*i}, v{ACC+2*i+1}")
    for i in range(16):
        e(f"v_xor_b32 v{CF+i}, s49, v{CF+i}")
    e(f"""
    buffer_store_dwordx4 {vr(CF,4)}, v5, s[24:27], s14 offen
    buffer_store_dwordx4 {vr(CF+4,4)}, v5, s[24:27], s14 offen offset:1024
    buffer_store_dwordx4 {vr(CF+8,4)}, v5, s[24:27], s15 offen
    buffer_store_dwordx4 {vr(CF+12,4)}, v5, s[24:27], s15 offen offset:1024
    s_endpgm
    """)

def gen_k2():
    e = Em()
    e(f"""
    s_cmp_ge_u32 s2, {K2_GRID}
    s_cbranch_scc1 K2_done
    s_load_dwordx2 s[8:9], s[0:1], 80
    s_load_dwordx2 s[38:39], s[0:1], 24
    s_load_dwordx4 s[40:43], s[0:1], 32
    v_and_b32 v1, 63, v0
    v_lshrrev_b32 v2, 6, v0
    s_nop 0
    v_readfirstlane_b32 s10, v2
    v_and_b32 v3, 31, v1
    v_lshrrev_b32 v4, 5, v1
    v_lshlrev_b32 v5, 4, v1
    s_mov_b32 s30, 0
    s_mov_b32 s31, -1
    s_waitcnt lgkmcnt(0)
    """)
    srd(e, 24, 8, 9, WS_BYTES)
    e(f"""
    s_cmp_ge_u32 s2, {N_ATT}
    s_cbranch_scc1 K2_dft
    """)
    gen_att(e)
    e.label("K2_dft")
    gen_dft(e)
    e.label("K2_done")
    e("s_endpgm")
    return e.text()
```

```python
from common import *

K3_GRID = 224
K3_LDS = 112 * 1024

def gen_gemm(e, tag, nks, abase, bbase, bstride, colbyte):
    nch = nks // 8
    ACC = 16
    AF = 48
    BF = 64
    e(f"""
    s_mul_i32 s13, s12, {2*nks*1024}
    s_add_u32 s13, s13, {abase}
    s_lshl_b32 s14, s10, 11
    s_add_u32 s13, s13, s14
    s_lshl_b32 s15, s11, 2
    s_add_u32 s15, s15, s10
    s_mul_i32 s16, s15, {bstride}
    s_add_u32 s16, s16, {bbase}
    """)
    ops = []
    def a_dma(c):
        for nt in range(2):
            off = nt * nks * 1024 + c * 8192
            e(f"""
            s_add_u32 s17, s14, {off}
            s_mov_b32 m0, s17
            s_add_u32 s18, s13, {off}
            buffer_load_dwordx4 v5, s[24:27], s18 offen lds
            buffer_load_dwordx4 v5, s[24:27], s18 offen offset:1024 lds
            """)
            ops.extend([("A", c), ("A", c)])
    def b_ld(c):
        base = BF + (c % 3) * 32
        e(f"s_add_u32 s19, s16, {c*8192}")
        e(f"s_add_u32 s20, s16, {c*8192+4096}")
        for k in range(8):
            sreg = "s19" if k < 4 else "s20"
            e(f"buffer_load_dwordx4 {vr(base+4*k,4)}, v5, s[24:27], {sreg} offen offset:{(k%4)*1024}")
            ops.append(("B", c))
    def wait_for(c):
        last = max(i for i, t in enumerate(ops) if t == ("A", c) or t == ("B", c))
        n = len(ops) - 1 - last
        assert n <= 63
        e(f"s_waitcnt vmcnt({n})")
    for c in range(3):
        a_dma(c); b_ld(c)
    for c in range(3, nch):
        a_dma(c)
    for c in range(nch):
        wait_for(c)
        e("s_barrier")
        base = BF + (c % 3) * 32
        def ard(k):
            st = k & 1
            ks = c * 8 + k
            e(f"ds_read_b128 {vr(AF+8*st,4)}, v5 offset:{ks*1024}")
            off2 = (nks + ks) * 1024
            if off2 < 65536:
                e(f"ds_read_b128 {vr(AF+8*st+4,4)}, v5 offset:{off2}")
            else:
                e(f"ds_read_b128 {vr(AF+8*st+4,4)}, v6 offset:{off2-65536}")
        ard(0)
        for k in range(8):
            st = k & 1
            if k < 7:
                ard(k + 1)
                e("s_waitcnt lgkmcnt(2)")
            else:
                e("s_waitcnt lgkmcnt(0)")
            c0 = "0" if (c == 0 and k == 0) else vr(ACC, 16)
            c1 = "0" if (c == 0 and k == 0) else vr(ACC + 16, 16)
            e(f"v_mfma_f32_32x32x16_bf16 {vr(ACC,16)}, {vr(AF+8*st,4)}, {vr(base+4*k,4)}, {c0}")
            e(f"v_mfma_f32_32x32x16_bf16 {vr(ACC+16,16)}, {vr(AF+8*st+4,4)}, {vr(base+4*k,4)}, {c1}")
        if c + 3 < nch:
            b_ld(c + 3)
    e(f"""
    s_lshl_b32 s15, s15, 5
    s_mul_i32 s15, s15, 1792
    s_lshl_b32 s17, s12, 7
    s_add_u32 s15, s15, s17
    s_add_u32 s15, s15, {colbyte}
    v_mul_u32_u24 v7, 1792, v3
    v_lshl_add_u32 v7, v4, 4, v7
    s_nop 7
    """)
    PB = 48
    for i in range(16):
        e(f"v_cvt_pk_bf16_f32 v{PB+i}, v{ACC+2*i}, v{ACC+2*i+1}")
    e("s_nop 1")
    for g in range(4):
        b = PB + 4 * g
        e(f"v_permlane32_swap_b32 v{b}, v{b+2}")
        e(f"v_permlane32_swap_b32 v{b+1}, v{b+3}")
    e("s_nop 1")
    for g in range(4):
        e(f"buffer_store_dwordx4 {vr(PB+4*g,4)}, v7, s[20:23], s15 offen offset:{g*32}")
    e("s_endpgm")

def gen_k3():
    e = Em()
    e(f"""
    s_cmp_ge_u32 s2, {K3_GRID}
    s_cbranch_scc1 K3_done
    s_load_dwordx2 s[8:9], s[0:1], 80
    s_load_dwordx2 s[6:7], s[0:1], 64
    v_and_b32 v1, 63, v0
    v_lshrrev_b32 v2, 6, v0
    s_nop 0
    v_readfirstlane_b32 s10, v2
    v_and_b32 v3, 31, v1
    v_lshrrev_b32 v4, 5, v1
    v_lshlrev_b32 v5, 4, v1
    v_add_u32 v6, 0x10000, v5
    s_waitcnt lgkmcnt(0)
    """)
    srd(e, 24, 8, 9, WS_BYTES)
    srd(e, 32, 6, 7, 2048 * 1792)
    e(f"""
    s_cmp_ge_u32 s2, 112
    s_cbranch_scc1 K3_dft
    s_and_b32 s11, s2, 15
    s_lshr_b32 s12, s2, 4
    """)
    t = Em()
    gen_gemm(t, "o", 32, WOF, OF, 32 * 1024, 0)
    e.lines += [l.replace("s[20:23]", "s[32:35]") for l in t.lines]
    e.label("K3_dft")
    e(f"""
    s_sub_u32 s12, s2, 112
    s_and_b32 s11, s12, 15
    s_lshr_b32 s12, s12, 4
    """)
    t = Em()
    gen_gemm(t, "d", 56, HF, UF, 56 * 1024, 896)
    e.lines += [l.replace("s[20:23]", "s[32:35]") for l in t.lines]
    e.label("K3_done")
    e("s_endpgm")
    return e.text()
```

```python
import sys
from common import *
import k1, k2, k3
NAME = "concat_heads__softmax_full_mha__spectral_fnet__prompt"
ref = open(f"cdna_kernels/{NAME}.s.ref").read().split("\n")
hdr = [l for l in ref if l.startswith(";") and "@launch" not in l and "Override launch" not in l and "grid=ceil" not in l]
out = "\n".join(hdr) + "\n"
out += f"; @launch kernel=k1_kernel grid=({k1.K1_GRID},1,1) block=(512,1,1) lds={k1.K1_LDS}\n"
out += f"; @launch kernel=k2_kernel grid=({k2.K2_GRID},1,1) block=(512,1,1) lds={k2.K2_LDS}\n"
out += f"; @launch kernel=k3_kernel grid=({k3.K3_GRID},1,1) block=(256,1,1) lds={k3.K3_LDS}\n"
out += '.amdgcn_target "amdgcn-amd-amdhsa--gfx950"\n.text\n'
out += khead("k1_kernel") + k1.gen_k1()
out += khead("k2_kernel") + k2.gen_k2()
out += khead("k3_kernel") + k3.gen_k3()
out += '.section .rodata,"a"\n'
out += kdesc("k1_kernel", k1.K1_VGPR) + kdesc("k2_kernel", k2.K2_VGPR) + kdesc("k3_kernel", k3.K3_VGPR)
dst = sys.argv[1] if len(sys.argv) > 1 else f"cdna_kernels/{NAME}.s"
open(dst, "w").write(out)
print("wrote", dst, len(out))
```

```python
import math, struct

QF = 0
KF = 2 << 20
VF = 4 << 20
OF = 6 << 20
UF = 8 << 20
WS_BYTES = 268435456

def f32bits(x):
    return struct.unpack("<I", struct.pack("<f", x))[0]

class Em:
    def __init__(self):
        self.lines = []
    def __call__(self, s):
        for l in s.strip("\n").split("\n"):
            self.lines.append("    " + l.strip() if not l.strip().endswith(":") else l.strip())
    def label(self, name):
        self.lines.append(name + ":")
    def text(self):
        return "\n".join(self.lines) + "\n"

def vr(base, n):
    return f"v[{base}:{base+n-1}]"
def sr(base, n):
    return f"s[{base}:{base+n-1}]"

def srd(e, d, lo, hi, nbytes):
    e(f"s_mov_b32 s{d}, s{lo}")
    e(f"s_mov_b32 s{d+1}, s{hi}")
    e(f"s_mov_b32 s{d+2}, {hex(nbytes)}")
    e(f"s_mov_b32 s{d+3}, 0x00020000")

def kdesc(name, vgpr, sgpr=96):
    acc = (vgpr + 3) // 4 * 4
    return f""".p2align 6
.amdhsa_kernel {name}
  .amdhsa_next_free_vgpr {vgpr}
  .amdhsa_next_free_sgpr {sgpr}
  .amdhsa_accum_offset {acc}
  .amdhsa_group_segment_fixed_size 0
  .amdhsa_kernarg_size 88
  .amdhsa_user_sgpr_count 2
  .amdhsa_user_sgpr_kernarg_segment_ptr 1
  .amdhsa_system_sgpr_workgroup_id_x 1
.end_amdhsa_kernel
"""
def khead(name):
    return f""".globl {name}
.p2align 8
.type {name},@function
{name}:
"""

import os
DIAG = os.environ.get("DIAG", "")
STAMP_BASE = 64 << 20
class Stamps:
    def __init__(self, e, kid, enabled, nw=4):
        self.e = e; self.kid = kid; self.n = 0; self.en = enabled; self.nw = nw
    def stamp(self):
        if not self.en: return
        i = self.n; self.n += 1
        assert i < 14
        if i == 0: self.e("s_memrealtime s[92:93]")
        self.e(f"s_memtime s[{64+2*i}:{65+2*i}]")
        self.e("s_waitcnt lgkmcnt(0)")
    def dump(self, role=0):
        if not self.en: return
        e = self.e
        e("s_memrealtime s[94:95]")
        e("s_waitcnt lgkmcnt(0)")
        e(f"s_lshl_b32 s60, s2, 3")
        e(f"s_add_u32 s60, s60, s10")
        e(f"s_lshl_b32 s60, s60, 7")
        e(f"s_add_u32 s60, s60, {STAMP_BASE + self.kid*(4<<20)}")
        e("v_mov_b32 v2, 0")
        for i in range(self.n):
            e(f"v_mov_b32 v3, s{64+2*i}")
            e(f"buffer_store_dword v3, v2, s[24:27], s60 offen offset:{4*i}")
        e(f"v_mov_b32 v3, s94")
        e(f"buffer_store_dword v3, v2, s[24:27], s60 offen offset:60")
        e(f"v_mov_b32 v3, s92")
        e(f"buffer_store_dword v3, v2, s[24:27], s60 offen offset:56")
```

```python
from common import *

C_SCALE = math.log2(math.e) / math.sqrt(28.0)
K1_GRID = 256
GS = 784
K1_LDS = 112 * GS
K1_VGPR = 160

def gen_k1():
    e = Em()
    e(f"""
    s_cmp_ge_u32 s2, {K1_GRID}
    s_cbranch_scc1 K1_done
    s_load_dwordx4 s[4:7], s[0:1], 0
    s_load_dwordx2 s[8:9], s[0:1], 80
    v_and_b32 v1, 63, v0
    v_lshrrev_b32 v2, 6, v0
    s_nop 0
    v_readfirstlane_b32 s10, v2
    v_and_b32 v3, 15, v1
    v_lshrrev_b32 v4, 4, v1
    """)
    if os.environ.get("K1MAP", "0") == "0":
        e("s_and_b32 s11, s2, 15\ns_lshr_b32 s12, s2, 4")
    else:
        e("s_and_b32 s12, s2, 15\ns_lshr_b32 s11, s2, 4")
    e(f"""
    v_mul_u32_u24 v6, 43, v1
    v_lshrrev_b32 v6, 9, v6
    v_mul_u32_u24 v7, 12, v6
    v_sub_u32 v7, v1, v7
    v_lshrrev_b32 v8, 2, v7
    v_and_b32 v9, 3, v7
    v_mul_u32_u24 v6, 2688, v6
    v_mul_u32_u24 v8, 896, v8
    v_lshlrev_b32 v9, 4, v9
    v_add3_u32 v6, v6, v8, v9
    s_mul_i32 s13, s12, 56
    v_add_u32 v6, s13, v6
    v_mul_u32_u24 v7, 896, v3
    v_lshl_add_u32 v7, v4, 4, v7
    s_lshl_b32 s14, s11, 7
    s_lshl_b32 s15, s10, 4
    s_add_u32 s14, s14, s15
    s_mul_i32 s14, s14, 896
    s_mul_i32 s15, s10, 10752
    s_mul_i32 s28, s10, {GS}
    s_waitcnt lgkmcnt(0)
    """)
    srd(e, 24, 8, 9, WS_BYTES)
    srd(e, 16, 4, 5, 2048 * 896)
    srd(e, 20, 6, 7, 448 * 2688)
    st = Stamps(e, 0, "1" in DIAG, 8)
    st.stamp()
    XB = 96
    for m in range(14):
        e(f"""
        s_mov_b32 exec_hi, 0xffff
        s_add_u32 s29, s28, {m*8*GS}
        s_mov_b32 m0, s29
        s_add_u32 s29, s15, {m*8*10752}
        buffer_load_dwordx4 v6, s[20:23], s29 offen lds
        s_mov_b32 exec_hi, -1
        buffer_load_dwordx4 {vr(XB+4*m,4)}, v7, s[16:19], s14 offen offset:{m*64}
        """)
    st.stamp()
    e(f"""
    v_mul_u32_u24 v8, {2*GS}, v4
    v_lshrrev_b32 v9, 2, v3
    v_mul_u32_u24 v9, 192, v9
    v_and_b32 v10, 3, v3
    v_lshlrev_b32 v10, 3, v10
    v_add3_u32 v8, v8, v9, v10
    v_add_u32 v9, {7*8*GS}, v8
    """)
    ACC = 16
    WB = [40, 64]
    def wread(m, sb):
        base = "v8" if m < 7 else "v9"
        off = (m % 7) * 8 * GS
        for t in range(6):
            slot, b = t >> 1, t & 1
            for rd in range(2):
                e(f"ds_read_b64_tr_b16 {vr(sb+t*4+rd*2,2)}, {base} offset:{off+rd*GS+slot*64+b*32}")
    def mfmas(m, sb):
        x = vr(XB + 4 * m, 4)
        for t in range(6):
            c = "0" if m == 0 else vr(ACC + 4 * t, 4)
            w = vr(sb + 4 * t, 4)
            if t < 4:
                e(f"v_mfma_f32_16x16x32_bf16 {vr(ACC+4*t,4)}, {w}, {x}, {c}")
            else:
                e(f"v_mfma_f32_16x16x32_bf16 {vr(ACC+4*t,4)}, {x}, {w}, {c}")
    for p in range(7):
        m = 2 * p
        e(f"s_waitcnt vmcnt({2*(13-(m+1))})")
        e("s_barrier")
        if p in (0, 3): st.stamp()
        wread(m, WB[0])
        wread(m + 1, WB[1])
        e("s_waitcnt lgkmcnt(12)")
        mfmas(m, WB[0])
        e("s_waitcnt lgkmcnt(0)")
        mfmas(m + 1, WB[1])
    st.stamp()
    e(f"""
    s_mov_b32 s34, {hex(f32bits(C_SCALE))}
    v_cmp_eq_u32 s[40:41], 3, v4
    v_cmp_le_u32 s[42:43], 12, v3
    v_cmp_eq_u32 vcc, 12, v3
    v_mov_b32 v10, 0x3f803f80
    v_lshrrev_b32 v11, 1, v4
    v_and_b32 v12, 1, v4
    v_cndmask_b32 v10, 0, v10, vcc
    v_lshlrev_b32 v13, 4, v3
    v_lshl_add_u32 v13, v11, 9, v13
    v_lshl_add_u32 v13, v12, 3, v13
    v_and_b32 v14, 3, v3
    v_bfe_u32 v15, v3, 2, 1
    v_lshl_add_u32 v14, v15, 3, v14
    v_bfe_u32 v15, v3, 3, 1
    v_lshl_add_u32 v14, v15, 2, v14
    v_lshlrev_b32 v14, 4, v14
    v_lshl_add_u32 v14, v12, 9, v14
    v_lshl_add_u32 v14, v11, 3, v14
    s_lshl_b32 s13, s12, 6
    s_lshl_b32 s14, s11, 2
    s_add_u32 s13, s13, s14
    s_lshr_b32 s14, s10, 1
    s_add_u32 s13, s13, s14
    s_lshl_b32 s13, s13, 11
    s_and_b32 s14, s10, 1
    s_lshl_b32 s15, s14, 8
    s_lshl_b32 s14, s14, 10
    s_add_u32 s15, s15, s13
    s_add_u32 s14, s14, s13
    s_add_u32 s28, s15, {KF}
    s_add_u32 s14, s14, {VF}
    """)
    for r in range(8):
        e(f"v_mul_f32 v{ACC+r}, s34, v{ACC+r}")
    for r in range(4, 8):
        e(f"v_cndmask_b32 v{ACC+r}, v{ACC+r}, 0, s[40:41]")
    e(f"v_cndmask_b32 v{ACC+12}, v{ACC+12}, 1.0, s[40:41]")
    for r in range(13, 16):
        e(f"v_cndmask_b32 v{ACC+r}, v{ACC+r}, 0, s[40:41]")
    PK = 40
    for i in range(12):
        e(f"v_cvt_pk_bf16_f32 v{PK+i}, v{ACC+2*i}, v{ACC+2*i+1}")
    for i in (10, 11):
        e(f"v_cndmask_b32 v{PK+i}, v{PK+i}, v10, s[42:43]")
    e(f"""
    buffer_store_dwordx2 {vr(PK,2)}, v13, s[24:27], s15 offen
    buffer_store_dwordx2 {vr(PK+2,2)}, v13, s[24:27], s15 offen offset:1024
    buffer_store_dwordx2 {vr(PK+4,2)}, v13, s[24:27], s28 offen
    buffer_store_dwordx2 {vr(PK+6,2)}, v13, s[24:27], s28 offen offset:1024
    buffer_store_dwordx2 {vr(PK+8,2)}, v14, s[24:27], s14 offen
    buffer_store_dwordx2 {vr(PK+10,2)}, v14, s[24:27], s14 offen offset:256
    """)
    if st.en: e("s_waitcnt vmcnt(0)")
    st.stamp()
    st.dump()
    e.label("K1_done")
    e("s_endpgm")
    return e.text()
```

```python
from common import *

N_ATT = 256
N_DFT = 224
K2_GRID = N_ATT + N_DFT
K2_LDS = 81920
K2_VGPR = 128
L_THRESH = 2.0 ** 64
L_MAXOK = 2.0 ** 120
ROT = int(os.environ.get("ROT", "31"))
ROTC = int(os.environ.get("ROTC", "1"))

class VQ:
    def __init__(self): self.q = []
    def add(self, tag, n=1): self.q += [tag] * n
    def need(self, tags):
        last = -1
        for i, t in enumerate(self.q):
            if t in tags: last = i
        return len(self.q) - 1 - last

def gen_att(e, st):
    Q0, Q1 = 8, 12
    KN, VC, P, O = 16, 24, 32, 40
    SA, SB = 56, 72
    VM, T1, T2, T3, VD = 88, 89, 90, 91, 92
    VL, VR = 5, 6
    e(f"""
    s_and_b32 s11, s2, 15
    s_lshr_b32 s12, s2, 4
    s_lshr_b32 s13, s10, 2
    s_and_b32 s14, s10, 3
    s_lshl_b32 s15, s11, 6
    s_lshl_b32 s16, s12, 2
    s_add_u32 s16, s16, s14
    s_add_u32 s16, s16, s15
    s_lshl_b32 s16, s16, 11
    buffer_load_dwordx4 {vr(Q0,4)}, v{VL}, s[24:27], s16 offen
    buffer_load_dwordx4 {vr(Q1,4)}, v{VL}, s[24:27], s16 offen offset:1024
    s_lshl_b32 s17, s13, 5
    s_add_u32 s17, s17, s15
    s_lshl_b32 s17, s17, 11
    s_add_u32 s32, s17, {KF}
    s_add_u32 s33, s17, {VF}
    buffer_load_dwordx4 {vr(P,4)}, v{VL}, s[24:27], s32 offen
    buffer_load_dwordx4 {vr(P+4,4)}, v{VL}, s[24:27], s32 offen offset:1024
    buffer_load_dwordx4 {vr(KN,4)}, v{VL}, s[24:27], s32 offen offset:2048
    buffer_load_dwordx4 {vr(KN+4,4)}, v{VL}, s[24:27], s32 offen offset:3072
    buffer_load_dwordx4 {vr(VC,4)}, v{VL}, s[24:27], s33 offen
    s_lshl_b32 s18, s14, 11
    s_add_u32 s19, s32, 4096
    s_add_u32 s20, s33, {1024-4096}
    s_cmp_lt_u32 s14, 2
    s_cselect_b32 s19, s19, s20
    s_add_u32 s19, s19, s18
    s_lshl_b32 s20, s13, 13
    s_add_u32 s18, s18, s20
    v_add_u32 v{VR}, s20, v{VL}
    """)
    def dma(buf):
        e(f"""
        s_add_u32 s21, s18, {buf*16384}
        s_mov_b32 m0, s21
        s_nop 0
        buffer_load_dwordx4 v{VL}, s[24:27], s19 offen lds
        buffer_load_dwordx4 v{VL}, s[24:27], s19 offen offset:1024 lds
        s_add_u32 s19, s19, 4096
        """)
    for c in range(2):
        dma(c)
    for r in range(16):
        e(f"v_mov_b32 v{O+r}, 0")
    for r in range(4):
        e(f"v_mov_b32 v{VC+4+r}, 0")
    e(f"""
    s_mov_b32 s22, {hex(f32bits(L_THRESH))}
    s_mov_b32 s23, 0
    s_waitcnt vmcnt(4)
    v_mfma_f32_32x32x16_bf16 {vr(SA,16)}, {vr(P,4)}, {vr(Q0,4)}, 0
    v_mfma_f32_32x32x16_bf16 {vr(SA,16)}, {vr(P+4,4)}, {vr(Q1,4)}, {vr(SA,16)}
    s_nop 15
    v_max3_f32 v{T1}, v{SA}, v{SA+1}, v{SA+2}
    v_max3_f32 v{T2}, v{SA+3}, v{SA+4}, v{SA+5}
    v_max3_f32 v{T1}, v{T1}, v{SA+6}, v{SA+7}
    v_max3_f32 v{T2}, v{T2}, v{SA+8}, v{SA+9}
    v_max3_f32 v{T1}, v{T1}, v{SA+10}, v{SA+11}
    v_max3_f32 v{T2}, v{T2}, v{SA+12}, v{SA+13}
    v_max3_f32 v{T1}, v{T1}, v{SA+14}, v{SA+15}
    v_max_f32 v{T1}, v{T1}, v{T2}
    v_mov_b32 v{T2}, v{T1}
    s_nop 1
    v_permlane32_swap_b32 v{T1}, v{T2}
    s_nop 1
    v_max_f32 v{T1}, v{T1}, v{T2}
    v_cvt_pk_bf16_f32 v{T2}, v{T1}, v{T1}
    v_and_b32 v{VM}, 0xffff0000, v{T2}
    v_lshrrev_b32 v{T2}, 16, v{VM}
    v_xor_b32 v{T2}, 0x8000, v{T2}
    v_cndmask_b32 v{Q1+2}, v{Q1+2}, v{T2}, s[30:31]
    """)
    for r in range(16):
        e(f"v_sub_f32 v{SA+r}, v{SA+r}, v{VM}")
    for r in range(4):
        e(f"v_mov_b32 v{P+4+r}, 0")
    st.stamp()
    rare = []
    def tile(t8, last_stage_info, uid):
        buf = t8 >> 1
        SC, SN = (SA, SB) if t8 % 2 == 0 else (SB, SA)
        base = buf * 16384
        ko = base + (t8 & 1) * 2048
        vo = base + 4096 + (t8 & 1) * 2048
        E = lambda i: e(f"v_exp_f32 v{SC+i}, v{SC+i}")
        C = lambda i: e(f"v_cvt_pk_bf16_f32 v{P+i}, v{SC+2*i}, v{SC+2*i+1}")
        if t8 % 2 == 0:
            gs = last_stage_info
            n = 2 if gs is None else min(2, 2 * (15 - gs))
            e(f"s_waitcnt vmcnt({n})")
            e("s_barrier")
            if gs is None or gs + 2 <= 15:
                dma((buf + 2) & 3)
            else:
                e("s_nop 5")
            e(f"v_cmp_lt_f32 vcc, s22, v{O+12}")
            e("s_waitcnt lgkmcnt(3)")
            e("s_nop 1")
            e(f"s_cbranch_vccnz ATT_rare{uid}")
            rare.append((uid, SC))
        else:
            e("s_waitcnt lgkmcnt(3)")
            e("s_nop 0")
        e(f"v_mfma_f32_32x32x16_bf16 {vr(O,16)}, {vr(VC+4,4)}, {vr(P+4,4)}, {vr(O,16)}")
        if t8 % 2 == 0: e.label(f"ATT_back{uid}")
        e(f"ds_read_b128 {vr(VC+4,4)}, v{VR} offset:{vo}")
        E(0); E(1); E(2); C(0); E(3)
        e("s_waitcnt lgkmcnt(3)")
        e(f"v_mfma_f32_32x32x16_bf16 {vr(SN,16)}, {vr(KN,4)}, {vr(Q0,4)}, 0")
        e(f"ds_read_b128 {vr(KN,4)}, v{VR} offset:{ko}")
        E(4); C(1); E(5); E(6); C(2); E(7)
        e("s_waitcnt lgkmcnt(3)")
        e(f"v_mfma_f32_32x32x16_bf16 {vr(SN,16)}, {vr(KN+4,4)}, {vr(Q1,4)}, {vr(SN,16)}")
        e(f"ds_read_b128 {vr(KN+4,4)}, v{VR} offset:{ko+1024}")
        E(8); C(3); E(9); E(10); C(4); E(11)
        e("s_waitcnt lgkmcnt(3)")
        e(f"v_mfma_f32_32x32x16_bf16 {vr(O,16)}, {vr(VC,4)}, {vr(P,4)}, {vr(O,16)}")
        e(f"ds_read_b128 {vr(VC,4)}, v{VR} offset:{vo+1024}")
        E(12); C(5); E(13); E(14); C(6); E(15)
        e("s_nop 0")
        C(7)
    e.label("ATT_loop")
    for t8 in range(8):
        tile(t8, None, f"L{t8}")
    e(f"""
    s_add_u32 s23, s23, 1
    s_cmp_lt_u32 s23, 3
    s_cbranch_scc1 ATT_loop
    """)
    for t8 in range(8):
        tile(t8, 12 + (t8 >> 1), f"T{t8}")
    st.stamp()
    e(f"""
    s_waitcnt lgkmcnt(3)
    s_nop 0
    v_mfma_f32_32x32x16_bf16 {vr(O,16)}, {vr(VC+4,4)}, {vr(P+4,4)}, {vr(O,16)}
    s_nop 15
    s_mov_b32 s21, {hex(f32bits(L_MAXOK))}
    s_nop 3
    v_cmp_nle_f32 vcc, v{O+12}, s21
    s_and_b64 vcc, vcc, s[30:31]
    s_cbranch_vccnz ATT_safe
    """)
    e.label("ATT_merge")
    e(f"""
    s_waitcnt lgkmcnt(0)
    s_barrier
    s_lshl_b32 s21, s14, 12
    v_add_u32 v{T3}, s21, v{VL}
    v_lshrrev_b32 v{T2}, 2, v{VL}
    s_lshl_b32 s21, s14, 8
    s_add_u32 s21, s21, 16384
    v_add_u32 v{T2}, s21, v{T2}
    s_cmp_eq_u32 s13, 0
    s_cbranch_scc1 ATT_lo
    ds_write_b128 v{T3}, {vr(O,4)}
    ds_write_b128 v{T3}, {vr(O+4,4)} offset:1024
    ds_write_b128 v{T3}, {vr(O+8,4)} offset:2048
    ds_write_b128 v{T3}, {vr(O+12,4)} offset:3072
    ds_write_b32 v{T2}, v{VM}
    s_waitcnt lgkmcnt(0)
    s_barrier
    """)
    st.stamp(); st.dump()
    e("s_endpgm")
    e.label("ATT_lo")
    e(f"""
    s_barrier
    ds_read_b32 v{VD}, v{T2}
    ds_read_b128 {vr(SA,4)}, v{T3}
    ds_read_b128 {vr(SA+4,4)}, v{T3} offset:1024
    ds_read_b128 {vr(SA+8,4)}, v{T3} offset:2048
    ds_read_b128 {vr(SA+12,4)}, v{T3} offset:3072
    s_waitcnt lgkmcnt(4)
    v_max_f32 v{T1}, v{VM}, v{VD}
    v_sub_f32 v{T2}, v{VM}, v{T1}
    v_sub_f32 v{T3}, v{VD}, v{T1}
    v_exp_f32 v{T2}, v{T2}
    v_exp_f32 v{T3}, v{T3}
    s_waitcnt lgkmcnt(0)
    """)
    for r in range(16):
        e(f"v_mul_f32 v{SA+r}, v{SA+r}, v{T3}")
    for r in range(16):
        e(f"v_fma_f32 v{O+r}, v{O+r}, v{T2}, v{SA+r}")
    e(f"""
    v_mov_b32 v{T1}, v{O+12}
    v_mov_b32 v{T2}, v{O+12}
    s_nop 1
    v_permlane32_swap_b32 v{T1}, v{T2}
    s_nop 1
    v_rcp_f32 v{T2}, v{T2}
    v_and_b32 v{T1}, 15, v1
    v_lshlrev_b32 v{T1}, 4, v{T1}
    v_lshl_add_u32 v{T1}, v4, 8, v{T1}
    v_bfe_u32 v{T3}, v1, 4, 1
    v_lshl_add_u32 v{T1}, v{T3}, 14, v{T1}
    """)
    for r in range(16):
        e(f"v_mul_f32 v{O+r}, v{O+r}, v{T2}")
    for r in range(12, 16):
        e(f"v_cndmask_b32 v{O+r}, v{O+r}, 0, s[30:31]")
    for i in range(8):
        e(f"v_cvt_pk_bf16_f32 v{P+i}, v{O+2*i}, v{O+2*i+1}")
    e(f"""
    s_lshl_b32 s21, s12, 2
    s_add_u32 s21, s21, s14
    s_lshl_b32 s21, s21, 15
    s_lshl_b32 s20, s11, 10
    s_add_u32 s21, s21, s20
    s_add_u32 s21, s21, {OF}
    buffer_store_dwordx4 {vr(P,4)}, v{T1}, s[24:27], s21 offen
    buffer_store_dwordx4 {vr(P+4,4)}, v{T1}, s[24:27], s21 offen offset:512
    """)
    if st.en: e("s_waitcnt vmcnt(0)")
    st.n -= 1
    st.stamp(); st.dump()
    e("s_endpgm")
    for (uid, SC) in rare:
        e.label(f"ATT_rare{uid}")
        e(f"""
        v_mfma_f32_32x32x16_bf16 {vr(O,16)}, {vr(VC+4,4)}, {vr(P+4,4)}, {vr(O,16)}
        s_nop 15
        v_mov_b32 v{T1}, v{O+12}
        v_mov_b32 v{T2}, v{O+12}
        s_nop 1
        v_permlane32_swap_b32 v{T1}, v{T2}
        s_nop 1
        v_frexp_exp_i32_f32 v{T1}, v{T2}
        v_med3_i32 v{T1}, v{T1}, 0, 64
        v_cvt_f32_i32 v{T1}, v{T1}
        v_add_f32 v{T1}, v{VM}, v{T1}
        v_cvt_pk_bf16_f32 v{T2}, v{T1}, v{T1}
        v_and_b32 v{T3}, 0xffff0000, v{T2}
        v_sub_f32 v{VD}, v{T3}, v{VM}
        v_mov_b32 v{VM}, v{T3}
        v_lshrrev_b32 v{T2}, 16, v{T3}
        v_xor_b32 v{T2}, 0x8000, v{T2}
        v_cndmask_b32 v{Q1+2}, v{Q1+2}, v{T2}, s[30:31]
        v_sub_f32 v{T1}, 0, v{VD}
        v_exp_f32 v{T1}, v{T1}
        """)
        for r in range(16):
            e(f"v_sub_f32 v{SC+r}, v{SC+r}, v{VD}")
        for r in range(16):
            e(f"v_mul_f32 v{O+r}, v{O+r}, v{T1}")
        e(f"""
        s_nop 1
        s_branch ATT_back{uid}
        """)
    e.label("ATT_safe")
    e(f"""
    s_waitcnt lgkmcnt(0)
    v_cndmask_b32 v{Q1+2}, v{Q1+2}, 0, s[30:31]
    v_mov_b32 v{VM}, 0xff7fffff
    s_mov_b32 s23, 0
    """)
    for r in range(16):
        e(f"v_mov_b32 v{O+r}, 0")
    e.label("ATT_safe_loop")
    e(f"""
    buffer_load_dwordx4 {vr(KN,4)}, v{VL}, s[24:27], s32 offen
    buffer_load_dwordx4 {vr(KN+4,4)}, v{VL}, s[24:27], s32 offen offset:1024
    buffer_load_dwordx4 {vr(VC,4)}, v{VL}, s[24:27], s33 offen
    buffer_load_dwordx4 {vr(VC+4,4)}, v{VL}, s[24:27], s33 offen offset:1024
    s_add_u32 s32, s32, 2048
    s_add_u32 s33, s33, 2048
    s_waitcnt vmcnt(0)
    v_mfma_f32_32x32x16_bf16 {vr(SA,16)}, {vr(KN,4)}, {vr(Q0,4)}, 0
    v_mfma_f32_32x32x16_bf16 {vr(SA,16)}, {vr(KN+4,4)}, {vr(Q1,4)}, {vr(SA,16)}
    s_nop 15
    v_max3_f32 v{T1}, v{SA}, v{SA+1}, v{SA+2}
    v_max3_f32 v{T2}, v{SA+3}, v{SA+4}, v{SA+5}
    v_max3_f32 v{T1}, v{T1}, v{SA+6}, v{SA+7}
    v_max3_f32 v{T2}, v{T2}, v{SA+8}, v{SA+9}
    v_max3_f32 v{T1}, v{T1}, v{SA+10}, v{SA+11}
    v_max3_f32 v{T2}, v{T2}, v{SA+12}, v{SA+13}
    v_max3_f32 v{T1}, v{T1}, v{SA+14}, v{SA+15}
    v_max3_f32 v{T1}, v{T1}, v{T2}, v{VM}
    v_mov_b32 v{T2}, v{T1}
    s_nop 1
    v_permlane32_swap_b32 v{T1}, v{T2}
    s_nop 1
    v_max_f32 v{T1}, v{T1}, v{T2}
    v_sub_f32 v{T2}, v{VM}, v{T1}
    v_exp_f32 v{T2}, v{T2}
    v_mov_b32 v{VM}, v{T1}
    """)
    for r in range(16):
        e(f"v_sub_f32 v{SA+r}, v{SA+r}, v{VM}")
    for r in range(16):
        e(f"v_exp_f32 v{SA+r}, v{SA+r}")
    for r in range(16):
        e(f"v_mul_f32 v{O+r}, v{O+r}, v{T2}")
    for i in range(8):
        e(f"v_cvt_pk_bf16_f32 v{P+i}, v{SA+2*i}, v{SA+2*i+1}")
    e(f"""
    s_nop 1
    v_mfma_f32_32x32x16_bf16 {vr(O,16)}, {vr(VC,4)}, {vr(P,4)}, {vr(O,16)}
    v_mfma_f32_32x32x16_bf16 {vr(O,16)}, {vr(VC+4,4)}, {vr(P+4,4)}, {vr(O,16)}
    s_nop 15
    s_add_u32 s23, s23, 1
    s_cmp_lt_u32 s23, 32
    s_cbranch_scc1 ATT_safe_loop
    s_branch ATT_merge
    """)

def gen_dft(e, stm):
    XO = 49152
    ACC = 8
    FR = 72
    VCA, VXA0, VXA1 = 104, 105, 106
    VC0, VC1, VXS = 107, 108, 109
    NST = 32
    e(f"""
    s_sub_u32 s11, s2, {N_ATT}
    s_and_b32 s12, s11, 31
    s_lshr_b32 s13, s11, 5
    s_cmp_ge_u32 s12, 16
    s_cselect_b32 s16, s42, s40
    s_cselect_b32 s17, s43, s41
    s_mov_b32 s18, {2048*4096}
    s_mov_b32 s19, 0x00020000
    s_and_b32 s44, s10, 1
    s_lshr_b32 s45, s10, 1
    """)
    srd(e, 20, 38, 39, 2048 * 896)
    e(f"""
    v_lshrrev_b32 v6, 3, v1
    v_and_b32 v7, 7, v1
    v_lshrrev_b32 v2, 4, v1
    v_xor_b32 v2, v7, v2
    v_lshlrev_b32 v2, 4, v2
    v_lshl_add_u32 v{VC0}, v6, 12, v2
    v_xor_b32 v{VC1}, 64, v{VC0}
    v_add_u32 v{VC1}, 0x8000, v{VC1}
    v_bfe_u32 v2, v1, 4, 1
    v_lshlrev_b32 v2, 2, v2
    v_xor_b32 v2, v7, v2
    v_lshlrev_b32 v2, 4, v2
    v_mul_u32_u24 v{VXS}, 896, v6
    v_add_u32 v{VXS}, v{VXS}, v2
    s_and_b32 s14, s12, 15
    s_lshl_b32 s14, s14, 7
    s_lshl_b32 s15, s10, 4
    s_add_u32 s14, s14, s15
    s_lshl_b32 s14, s14, 12
    s_mul_i32 s15, s10, {8*896}
    s_lshl_b32 s28, s13, 7
    s_add_u32 s15, s15, s28
    s_lshl_b32 s28, s10, 11
    s_lshl_b32 s29, s10, 10
    s_add_u32 s29, s29, {XO}
    s_lshr_b32 s51, s12, 3
    s_lshl_b32 s51, s51, 3
    s_mul_i32 s52, s13, {ROTC}
    s_add_u32 s51, s51, s52
    s_and_b32 s51, s51, {ROT}
    s_mov_b32 s52, s51
    """)
    vq = VQ()
    def xdma(st):
        e(f"""
        s_add_u32 s35, s29, {(st%3)*8192}
        s_mov_b32 m0, s35
        s_mul_i32 s36, s51, {64*896}
        s_add_u32 s36, s36, s15
        s_add_u32 s51, s51, 1
        buffer_load_dwordx4 v{VXS}, s[20:23], s36 offen lds
        s_and_b32 s51, s51, 31
        """)
        vq.add(("X", st))
    def cdma(st):
        e(f"""
        s_add_u32 s35, s28, {(st%3)*16384}
        s_mov_b32 m0, s35
        s_lshl_b32 s36, s52, 7
        s_add_u32 s36, s36, s14
        s_add_u32 s35, s35, 1024
        buffer_load_dwordx4 v{VC0}, s[16:19], s36 offen lds
        s_mov_b32 m0, s35
        s_add_u32 s52, s52, 1
        buffer_load_dwordx4 v{VC1}, s[16:19], s36 offen lds
        s_and_b32 s52, s52, 31
        """)
        vq.add(("C", st), 2)
    cdma(0); xdma(0); cdma(1); xdma(1)
    e(f"""
    s_lshl_b32 s46, s44, 13
    s_lshl_b32 s47, s45, 1
    v_add_u32 v2, s47, v4
    v_bfe_u32 v6, v1, 1, 3
    v_xor_b32 v2, v2, v6
    v_lshlrev_b32 v2, 4, v2
    v_lshl_add_u32 v2, v3, 7, v2
    v_add_u32 v{VCA}, s46, v2
    v_and_b32 v6, 15, v1
    v_lshrrev_b32 v6, 2, v6
    v_lshl_add_u32 v6, v4, 3, v6
    v_lshlrev_b32 v6, 7, v6
    v_bfe_u32 v7, v1, 3, 1
    v_lshl_add_u32 v6, v7, 6, v6
    v_bfe_u32 v7, v1, 4, 1
    v_lshl_add_u32 v6, v7, 5, v6
    v_bfe_u32 v7, v1, 0, 1
    v_lshl_add_u32 v6, v7, 4, v6
    v_bfe_u32 v7, v1, 1, 1
    v_lshl_add_u32 v6, v7, 3, v6
    s_lshl_b32 s47, s45, 11
    s_add_u32 s47, s47, {XO - 32768}
    v_add_u32 v{VXA0}, s47, v6
    v_xor_b32 v{VXA1}, 64, v{VXA0}
    s_mov_b32 s48, 0
    """)
    for r in range(64):
        e(f"v_mov_b32 v{ACC+r}, 0")
    def reads(st):
        f = FR + 16 * (st & 1)
        co = (st % 3) * 16384
        xo = 32768 + (st % 3) * 8192
        e(f"ds_read_b128 {vr(f,4)}, v{VCA} offset:{co}")
        e(f"ds_read_b64_tr_b16 {vr(f+8,2)}, v{VXA0} offset:{xo}")
        e(f"ds_read_b64_tr_b16 {vr(f+10,2)}, v{VXA0} offset:{xo+512}")
        e(f"ds_read_b64_tr_b16 {vr(f+12,2)}, v{VXA1} offset:{xo}")
        e(f"ds_read_b64_tr_b16 {vr(f+14,2)}, v{VXA1} offset:{xo+512}")
        e(f"ds_read_b128 {vr(f+4,4)}, v{VCA} offset:{co+4096}")
    def mfmas(st):
        f = FR + 16 * (st & 1)
        for tt in range(2):
            for dt in range(2):
                acc = vr(ACC + 32 * tt + 16 * dt, 16)
                e(f"v_mfma_f32_32x32x16_bf16 {acc}, {vr(f+8+4*dt,4)}, {vr(f+4*tt,4)}, {acc}")
    def stage(st, wmax=None, first=False):
        w = vq.need([("C", st), ("X", st)])
        if wmax is not None: w = min(w, wmax)
        e(f"s_waitcnt vmcnt({w}) lgkmcnt(0)")
        e("s_barrier")
        if first: stm.stamp()
        reads(st)
        if st + 2 < NST: cdma(st + 2)
        if st + 2 < NST: xdma(st + 2)
        if not first: mfmas(st - 1)
        return w
    stage(0, first=True)
    import copy
    saved = (e.lines, copy.deepcopy(vq.q))
    ws = {}
    e.lines = []
    for st in range(1, 25):
        ws.setdefault(st % 6, []).append(stage(st))
    e.lines = saved[0]; q_after = copy.deepcopy(vq.q); vq.q = saved[1]
    e.label("DFT_loop")
    for st in range(1, 7):
        stage(st, min(ws[st % 6]))
    e(f"""
    s_add_u32 s48, s48, 1
    s_cmp_lt_u32 s48, 4
    s_cbranch_scc1 DFT_loop
    """)
    vq.q = q_after
    for st in range(25, 32):
        stage(st)
    e("s_waitcnt lgkmcnt(0)")
    mfmas(31)
    stm.stamp()
    e(f"""
    s_xor_b32 s36, s10, 4
    s_lshl_b32 s36, s36, 13
    s_lshl_b32 s35, s10, 13
    v_add_u32 v6, s36, v5
    v_add_u32 v7, s35, v5
    s_xor_b32 s36, s10, 2
    s_lshl_b32 s36, s36, 12
    s_lshl_b32 s35, s10, 12
    v_add_u32 v{VCA}, s36, v5
    v_add_u32 v{VXA0}, s35, v5
    s_cmp_ge_u32 s12, 16
    s_cselect_b32 s49, 0x80008000, 0
    s_cselect_b32 s50, 56, 0
    s_and_b32 s14, s12, 15
    s_lshl_b32 s14, s14, 3
    s_lshl_b32 s15, s44, 2
    s_add_u32 s14, s14, s15
    s_lshr_b32 s15, s45, 1
    s_lshl_b32 s15, s15, 1
    s_add_u32 s14, s14, s15
    s_mul_i32 s14, s14, 112
    s_add_u32 s14, s14, s50
    s_lshl_b32 s15, s13, 3
    s_add_u32 s14, s14, s15
    s_and_b32 s15, s45, 1
    s_lshl_b32 s15, s15, 2
    s_add_u32 s14, s14, s15
    s_lshl_b32 s14, s14, 8
    s_add_u32 s14, s14, {UF}
    v_and_b32 v2, 15, v1
    v_lshlrev_b32 v2, 4, v2
    v_lshl_add_u32 v2, v4, 8, v2
    v_bfe_u32 v3, v1, 4, 1
    v_mul_u32_u24 v3, {112*256}, v3
    v_add_u32 v2, v2, v3
    s_barrier
    s_cmp_ge_u32 s45, 2
    s_cbranch_scc1 DFT_hiA
    """)
    for hi in (0, 1):
        if hi: e.label("DFT_hiA")
        send = ACC + 32 * (1 - hi)
        keep = ACC + 32 * hi
        for c in range(8):
            e(f"ds_write_b128 v6, {vr(send+4*c,4)} offset:{c*1024}")
        e("s_waitcnt lgkmcnt(0)")
        e("s_barrier")
        for c in range(8):
            e(f"ds_read_b128 {vr(FR+4*c,4)}, v7 offset:{c*1024}")
        e("s_waitcnt lgkmcnt(0)")
        for r in range(32):
            e(f"v_add_f32 v{ACC+r}, v{keep+r}, v{FR+r}")
        if not hi: e("s_branch DFT_B")
    e.label("DFT_B")
    e(f"""
    s_barrier
    s_and_b32 s15, s45, 1
    s_cmp_eq_u32 s15, 1
    s_cbranch_scc1 DFT_hiB
    """)
    for hi in (0, 1):
        if hi: e.label("DFT_hiB")
        send = ACC + 16 * (1 - hi)
        keep = ACC + 16 * hi
        for c in range(4):
            e(f"ds_write_b128 v{VCA}, {vr(send+4*c,4)} offset:{c*1024}")
        e("s_waitcnt lgkmcnt(0)")
        e("s_barrier")
        for c in range(4):
            e(f"ds_read_b128 {vr(FR+4*c,4)}, v{VXA0} offset:{c*1024}")
        e("s_waitcnt lgkmcnt(0)")
        for r in range(16):
            e(f"v_add_f32 v{ACC+r}, v{keep+r}, v{FR+r}")
        if not hi: e("s_branch DFT_fin")
    e.label("DFT_fin")
    for i in range(8):
        e(f"v_cvt_pk_bf16_f32 v{FR+i}, v{ACC+2*i}, v{ACC+2*i+1}")
    for i in range(8):
        e(f"v_xor_b32 v{FR+i}, s49, v{FR+i}")
    e(f"buffer_store_dwordx4 {vr(FR,4)}, v2, s[24:27], s14 offen")
    e(f"buffer_store_dwordx4 {vr(FR+4,4)}, v2, s[24:27], s14 offen offset:512")
    if stm.en: e("s_waitcnt vmcnt(0)")
    stm.stamp(); stm.dump()
    e("s_endpgm")

def gen_k2():
    e = Em()
    e(f"""
    s_cmp_ge_u32 s2, {K2_GRID}
    s_cbranch_scc1 K2_done
    s_load_dwordx2 s[8:9], s[0:1], 80
    s_load_dwordx2 s[38:39], s[0:1], 24
    s_load_dwordx4 s[40:43], s[0:1], 32
    v_and_b32 v1, 63, v0
    v_lshrrev_b32 v2, 6, v0
    s_nop 0
    v_readfirstlane_b32 s10, v2
    v_and_b32 v3, 31, v1
    v_lshrrev_b32 v4, 5, v1
    v_lshlrev_b32 v5, 4, v1
    s_mov_b32 s30, 0
    s_mov_b32 s31, -1
    s_waitcnt lgkmcnt(0)
    """)
    srd(e, 24, 8, 9, WS_BYTES)
    st = Stamps(e, 1, "2" in DIAG, 8)
    st.stamp()
    e(f"""
    s_cmp_ge_u32 s2, {N_ATT}
    s_cbranch_scc1 K2_dft
    """)
    if os.environ.get("ONLY") == "dft": e("s_endpgm")
    if os.environ.get("APRIO", "1") != "0": e(f"s_setprio {os.environ.get('APRIO','1')}")
    gen_att(e, st)
    e.label("K2_dft")
    if os.environ.get("ONLY") == "att": e("s_endpgm")
    st.n = 1
    gen_dft(e, st)
    e.label("K2_done")
    e("s_endpgm")
    return e.text()
```

```python
from common import *
from k2 import VQ

K3_GRID = 224
K3_LDS = 112 * 1024
K3_VGPR = 168

def epilogue(e, stm, ACC, colbyte):
    PB = 48
    e(f"""
    s_lshl_b32 s15, s11, 7
    s_lshl_b32 s17, s10, 5
    s_add_u32 s15, s15, s17
    s_mul_i32 s15, s15, 1792
    s_lshl_b32 s17, s12, 7
    s_add_u32 s15, s15, s17
    s_add_u32 s15, s15, {colbyte}
    s_add_u32 s17, s15, {16*1792}
    v_mul_u32_u24 v7, 1792, v3
    v_lshl_add_u32 v7, v4, 5, v7
    """)
    for i in range(16):
        e(f"v_cvt_pk_bf16_f32 v{PB+i}, v{ACC+2*i}, v{ACC+2*i+1}")
    e("s_nop 1")
    for a in range(2):
        b = PB + 8 * a
        for r in range(2):
            e(f"v_permlane32_swap_b32 v{b+r}, v{b+4+r}")
            e(f"v_permlane32_swap_b32 v{b+2+r}, v{b+6+r}")
    e("s_nop 1")
    for a in range(2):
        b = PB + 8 * a
        for r in range(2):
            e(f"v_permlane16_swap_b32 v{b+r}, v{b+2+r}")
            e(f"v_permlane16_swap_b32 v{b+4+r}, v{b+6+r}")
    e("s_nop 1")
    for a in range(2):
        sreg = "s15" if a == 0 else "s17"
        e(f"buffer_store_dwordx4 {vr(PB+8*a,4)}, v7, s[32:35], {sreg} offen")
        e(f"buffer_store_dwordx4 {vr(PB+8*a+4,4)}, v7, s[32:35], {sreg} offen offset:16")
    if stm.en: e("s_waitcnt vmcnt(0)")
    stm.stamp(); stm.dump()
    e("s_endpgm")

def gen_gemm(e, kind):
    stm = Stamps(e, 2, '3' in DIAG, 8); stm.n = 1
    nk = 16 if kind == 'o' else 28
    abase = OF if kind == 'o' else UF
    tstride = nk * 1024
    ACC = 16
    WF = 48
    AF = 80
    NS = 10
    CH = 4
    nch = nk // CH
    vq = VQ()
    e(f"""
    s_lshl_b32 s13, s11, 3
    s_lshl_b32 s14, s10, 1
    s_add_u32 s13, s13, s14
    s_mul_i32 s13, s13, {tstride}
    s_add_u32 s13, s13, {abase}
    s_add_u32 s14, s13, {tstride}
    """)
    def aload(n):
        sl = AF + (n % NS) * 8
        o = n * 1024
        hi, lo = o // 4096 * 4096, o % 4096
        if lo == 0 and n > 0:
            e(f"s_add_u32 s13, s13, 4096")
            e(f"s_add_u32 s14, s14, 4096")
        e(f"buffer_load_dwordx4 {vr(sl,4)}, v5, s[24:27], s13 offen offset:{lo}")
        e(f"buffer_load_dwordx4 {vr(sl+4,4)}, v5, s[24:27], s14 offen offset:{lo}")
        vq.add(("A", n), 2)
    if kind == 'o':
        srd(e, 16, 36, 37, 448 * 896)
        e(f"""
        v_lshrrev_b32 v8, 3, v1
        v_mul_u32_u24 v8, 896, v8
        v_and_b32 v9, 7, v1
        v_bfe_u32 v10, v1, 4, 1
        v_lshlrev_b32 v10, 1, v10
        v_xor_b32 v9, v9, v10
        s_and_b32 s15, s10, 1
        s_lshl_b32 s15, s15, 2
        v_xor_b32 v9, s15, v9
        v_lshl_add_u32 v8, v9, 4, v8
        s_mul_i32 s15, s10, {8*896}
        s_lshl_b32 s16, s12, 7
        s_add_u32 s15, s15, s16
        s_lshl_b32 s28, s10, 10
        """.replace("s16", "s29"))
        def wdma(n):
            e(f"""
            s_add_u32 s29, s28, {n*4096}
            s_mov_b32 m0, s29
            s_add_u32 s29, s15, {n*28*896}
            buffer_load_dwordx4 v8, s[16:19], s29 offen lds
            """)
            vq.add(("W", n))
        e(f"""
        v_lshrrev_b32 v9, 2, v3
        v_lshl_add_u32 v9, v4, 3, v9
        v_lshlrev_b32 v9, 7, v9
        v_and_b32 v10, 3, v3
        v_lshl_add_u32 v9, v10, 3, v9
        v_lshrrev_b32 v10, 3, v3
        v_and_b32 v11, 1, v4
        v_lshl_add_u32 v10, v11, 1, v10
        v_lshl_add_u32 v12, v10, 5, v9
        v_xor_b32 v13, 32, v12
        v_xor_b32 v14, 64, v12
        v_xor_b32 v15, 96, v12
        """)
        def wread(n, sb):
            for c in range(4):
                e(f"ds_read_b64_tr_b16 {vr(sb+4*c,2)}, v{12+c} offset:{n*4096}")
                e(f"ds_read_b64_tr_b16 {vr(sb+4*c+2,2)}, v{12+c} offset:{n*4096+512}")
        NRD = 8
    else:
        e(f"""
        s_mov_b32 s16, s40
        s_mov_b32 s17, s41
        s_mov_b32 s18, {448*896}
        s_mov_b32 s19, 0x00020000
        s_mov_b32 s20, s42
        s_mov_b32 s21, s43
        s_mov_b32 s22, {448*896}
        s_mov_b32 s23, 0x00020000
        v_mul_u32_u24 v8, 896, v3
        v_lshl_add_u32 v8, v4, 4, v8
        s_lshl_b32 s15, s12, 6
        s_lshl_b32 s29, s10, 4
        s_add_u32 s15, s15, s29
        s_mul_i32 s15, s15, 896
        s_lshl_b32 s28, s10, 10
        v_add_u32 v9, 0x10000, v5
        """)
        def wdma(n):
            src = "s[16:19]" if n < 14 else "s[20:23]"
            e(f"""
            s_add_u32 s29, s28, {n*4096}
            s_mov_b32 m0, s29
            s_add_u32 s29, s15, {(n%14)*64}
            buffer_load_dwordx4 v8, {src}, s29 offen lds
            """)
            vq.add(("W", n))
        def wread(n, sb):
            for c in range(4):
                o = n * 4096 + c * 1024
                if o < 65536: e(f"ds_read_b128 {vr(sb+4*c,4)}, v5 offset:{o}")
                else: e(f"ds_read_b128 {vr(sb+4*c,4)}, v9 offset:{o-65536}")
        NRD = 4
    for n in range(nk):
        wdma(n)
        if n < NS: aload(n)
    stm.stamp()
    for n in range(nk):
        sb = WF + 16 * (n & 1)
        nb_ = WF + 16 * ((n + 1) & 1)
        if n % CH == 0:
            w = vq.need([("W", n + CH - 1), ("A", n)])
            e(f"s_waitcnt vmcnt({min(w,63)})")
            e("s_barrier")
            if n == 0: stm.stamp()
            wread(n, sb)
        else:
            e(f"s_waitcnt vmcnt({min(63, vq.need([('A', n)]))})")
        if (n + 1) % CH != 0:
            wread(n + 1, nb_)
            e(f"s_waitcnt lgkmcnt({NRD})")
        else:
            e("s_waitcnt lgkmcnt(0)")
        sl = AF + (n % NS) * 8
        for c in range(4):
            for a in range(2):
                acc = vr(ACC + 16 * a + 4 * c, 4)
                cc = "0" if n == 0 else acc
                e(f"v_mfma_f32_16x16x32_bf16 {acc}, {vr(sb+4*c,4)}, {vr(sl+4*a,4)}, {cc}")
        if n + NS < nk:
            aload(n + NS)
    stm.stamp()
    epilogue(e, stm, ACC, 0 if kind == 'o' else 896)

def gen_k3():
    e = Em()
    e(f"""
    s_cmp_ge_u32 s2, {K3_GRID}
    s_cbranch_scc1 K3_done
    s_load_dwordx2 s[8:9], s[0:1], 80
    s_load_dwordx2 s[6:7], s[0:1], 64
    s_load_dwordx2 s[36:37], s[0:1], 16
    s_load_dwordx4 s[40:43], s[0:1], 48
    v_and_b32 v1, 63, v0
    v_lshrrev_b32 v2, 6, v0
    s_nop 0
    v_readfirstlane_b32 s10, v2
    v_and_b32 v3, 15, v1
    v_lshrrev_b32 v4, 4, v1
    v_lshlrev_b32 v5, 4, v1
    s_waitcnt lgkmcnt(0)
    """)
    srd(e, 24, 8, 9, WS_BYTES)
    srd(e, 32, 6, 7, 2048 * 1792)
    Stamps(e, 2, '3' in DIAG, 8).stamp()
    e(f"""
    s_cmp_ge_u32 s2, 112
    s_cbranch_scc1 K3_o
    s_and_b32 s11, s2, 15
    s_lshr_b32 s12, s2, 4
    """)
    gen_gemm(e, 'd')
    e.label("K3_o")
    e(f"""
    s_sub_u32 s12, s2, 112
    s_and_b32 s11, s12, 15
    s_lshr_b32 s12, s12, 4
    """)
    gen_gemm(e, 'o')
    e.label("K3_done")
    e("s_endpgm")
    return e.text()
```
